```python
import torch

def _softmax(x, axis=-1):
    return torch.softmax(x, dim=axis)
def _gelu(x):
    return torch.nn.functional.gelu(x, approximate="tanh")
def _silu(x):
    return torch.nn.functional.silu(x)
def _sigmoid(x):
    return torch.sigmoid(x)
def _layernorm(x, axis=-1, eps=1e-5):
    m = x.mean(dim=axis, keepdim=True)
    v = x.var(dim=axis, keepdim=True, unbiased=False)
    return (x - m) / torch.sqrt(v + eps)
def _scatter_add(tgt, idx, src, axis=0):
    return tgt.clone().index_add_(axis, idx, src)
def _segment_sum(src, seg, n):
    out = torch.zeros((n,) + src.shape[1:], dtype=src.dtype)
    return out.index_add_(0, seg, src)
def _pad(x, pw):
    flat = tuple(v for pair in reversed(pw) for v in pair)
    return torch.nn.functional.pad(x, flat)

kernel_name = 'recurrent_scan__gqa_block_cached__mixer_token_mlp__decode'

def setup_inputs():

    _w = (lambda a: (lambda t: t.to(torch.bfloat16) if t.is_floating_point() else t)(torch.as_tensor(a)))
    def _A_setup():
        B, Sq, D = 2, 1, 576
        Hq, Hkv, Sk, Dh = 32, 16, 8192, 128
        assert Hq % Hkv == 0, (Hq, Hkv)
        return {
            "x": _w((lambda *s: torch.randn(*s, dtype=torch.bfloat16) * 0.1)(B, Sq, D)),
            "k_cache": _w((lambda *s: torch.randn(*s, dtype=torch.bfloat16) * 0.8)(B, Hkv, Sk, Dh)),
            "v_cache": _w((lambda *s: torch.randn(*s, dtype=torch.bfloat16) * 3.2)(B, Hkv, Sk, Dh)),
            "wq": _w((lambda *s: torch.randn(*s, dtype=torch.bfloat16) * 0.8)(D, Hq * Dh) * (D ** -0.5)),
            "wo": _w((lambda *s: torch.randn(*s, dtype=torch.bfloat16) * 3.2)(Hq * Dh, D) * ((Hq * Dh) ** -0.5)),
        }
    _A_in = _A_setup()

    def _B_setup():
        B, S, D, F = 2, 1, 576, 4608
        return {
            "x": _w((lambda *s: torch.randn(*s, dtype=torch.bfloat16) * 0.1)(B, S, D)),
            "w1": _w((lambda *s: torch.randn(*s, dtype=torch.bfloat16) * 3.2)(S, F) * (S ** -0.5)),
            "b1": _w((lambda *s: torch.randn(*s, dtype=torch.bfloat16) * 3.2)(F) * 0.02),
            "w2": _w((lambda *s: torch.randn(*s, dtype=torch.bfloat16) * 3.2)(F, S) * (F ** -0.5)),
            "b2": _w((lambda *s: torch.randn(*s, dtype=torch.bfloat16) * 3.2)(S) * 0.02),
        }
    _B_in = _B_setup()

    return {
        "A_x": _A_in["x"],
        "A_k_cache": _A_in["k_cache"],
        "A_v_cache": _A_in["v_cache"],
        "A_wq": _A_in["wq"],
        "A_wo": _A_in["wo"],
        "B_x": _B_in["x"],
        "B_w1": _B_in["w1"],
        "B_b1": _B_in["b1"],
        "B_w2": _B_in["w2"],
        "B_b2": _B_in["b2"],
    }

def reference(A_x, A_k_cache, A_v_cache, A_wq, A_wo, B_x, B_w1, B_b1, B_w2, B_b2):
    def _A_ref(x, k_cache, v_cache, wq, wo):
        B, Sq, D = x.shape
        Hq, Dh = 32, 128
        Hkv = k_cache.shape[1]
        rep = Hq // Hkv
        q = (lambda x, *d: x.permute(*d))((x @ wq).reshape(B, Sq, Hq, Dh), 0, 2, 1, 3)
        k = (lambda x, n, axis: torch.repeat_interleave(x, n, dim=axis))(k_cache, rep, axis=1)
        v = (lambda x, n, axis: torch.repeat_interleave(x, n, dim=axis))(v_cache, rep, axis=1)
        scores = torch.einsum("bhqd,bhkd->bhqk", q, k) * (Dh ** -0.5)
        p = _softmax(scores, axis=-1)
        o = torch.einsum("bhqk,bhkd->bhqd", p, v)
        return (lambda x, *d: x.permute(*d))(o, 0, 2, 1, 3).reshape(B, Sq, Hq * Dh) @ wo

    def _B_ref(x, w1, b1, w2, b2):
        B, S, D = x.shape
        h = _layernorm(x, axis=-1)
        u = torch.einsum("bsd,sf->bdf", h, w1) + b1
        u = _gelu(u)
        y = torch.einsum("bdf,fs->bds", u, w2) + b2
        return (lambda x, *d: x.permute(*d))(y, 0, 2, 1)

    x = A_x
    xn = _layernorm(x, axis=-1)
    s = _A_ref(xn, A_k_cache, A_v_cache, A_wq, A_wo)
    g = _silu(_B_ref(xn, B_w1, B_b1, B_w2, B_b2))
    return x + s * g
```

```python
from gcm import *
import sys
def kern(name, nw, W, pat, flag, mp, kv='seq', U=None):
    wgs=256
    chunk = (64<<20)//wgs
    nload = chunk//nw//1024
    o=[]; a=o.append
    a(' s_memrealtime s[20:21]')
    a(' s_load_dwordx4 s[4:7], s[0:1], 8')
    a(' s_load_dwordx2 s[16:17], s[0:1], 96')
    a(' v_lshrrev_b32 v2, 6, v0')
    a(' v_and_b32 v1, 63, v0')
    a(' s_nop 0')
    a(' v_readfirstlane_b32 s18, v2')
    if pat=='c':
        a(' v_lshlrev_b32 v1, 4, v1')
    elif pat=='t':
        a(' v_and_b32 v3, 3, v1')
        a(' v_lshlrev_b32 v3, 4, v3')
        a(' v_bfe_u32 v4, v1, 2, 2')
        a(' v_lshl_add_u32 v3, v4, 8, v3')
        a(' v_lshrrev_b32 v4, 4, v1')
        a(' v_lshl_add_u32 v1, v4, 6, v3')
    if mp in ('gx','wx'):
        a(' s_and_b32 s30, s2, 7')
        a(' s_lshr_b32 s31, s2, 3')
        a(' s_lshl_b32 s30, s30, 2')
        a(' s_lshr_b32 s33, s31, 3')
        a(' s_add_u32 s30, s30, s33')
        a(' s_and_b32 s31, s31, 7')
    else:
        a(' s_lshr_b32 s30, s2, 3')
        a(' s_and_b32 s31, s2, 7')
    a(' s_lshl_b32 s19, s30, 21')
    if mp in ('g','gx'):
        a(f' s_mul_i32 s3, s31, {nw*1024}')
        tstride = nw*1024*8
        wunit = 1024
    elif mp=='w4':
        a(f' s_mul_i32 s3, s31, {chunk}')
        tstride = None; wunit=4096
    else:
        a(f' s_mul_i32 s3, s31, {chunk}')
        tstride = nw*1024
        wunit = 1024
    a(' s_add_u32 s19, s19, s3')
    a(f' s_mul_i32 s3, s18, {wunit}')
    a(' s_add_u32 s19, s19, s3')
    a(' s_waitcnt lgkmcnt(0)')
    a(' s_mov_b32 s8, s4\n s_mov_b32 s9, s5\n s_mov_b32 s10, 0x4000000\n s_mov_b32 s11, 0x20000')
    a(' s_mov_b32 s12, s6\n s_mov_b32 s13, s7\n s_mov_b32 s14, 0x4000000\n s_mov_b32 s15, 0x20000')
    U = U or max(W,4)
    def off(i):
        if mp=='w4': return (i//4)*4096*nw + (i%4)*1024
        return i*tstride
    if kv=='seq':
        step = off(U)-off(0)
        for r,srd in ((0,8),(1,12)):
            a(f' s_mov_b32 s24, s19')
            a(f' s_mov_b32 s25, {nload//U}')
            a(f'L{name}_{r}:')
            for i in range(U):
                d = off(i); reg = 8+4*i
                a(f' s_waitcnt vmcnt({W-1})')
                a(f' s_add_u32 s26, s24, {d//4096*4096}')
                a(f' buffer_load_dwordx4 v[{reg}:{reg+3}], v1, s[{srd}:{srd+3}], s26 offen offset:{d%4096} {flag}')
            a(f' s_add_u32 s24, s24, {step}')
            a(' s_sub_u32 s25, s25, 1')
            a(' s_cmp_lg_u32 s25, 0')
            a(f' s_cbranch_scc1 L{name}_{r}')
            if r==0: a(' s_memrealtime s[28:29]')
    else:
        G = int(kv[3:])
        H = U//2
        step = off(H)-off(0)
        a(f' s_mov_b32 s24, s19')
        a(f' s_mov_b32 s25, {nload//H}')
        a(f'L{name}_0:')
        seq=[]
        for b in range(0,H,G):
            seq += [(8,i) for i in range(b,b+G)] + [(12,i) for i in range(b,b+G)]
        for j,(srd,i) in enumerate(seq):
            d = off(i); reg = 8+4*j
            a(f' s_waitcnt vmcnt({W-1})')
            a(f' s_add_u32 s26, s24, {d//4096*4096}')
            a(f' buffer_load_dwordx4 v[{reg}:{reg+3}], v1, s[{srd}:{srd+3}], s26 offen offset:{d%4096} {flag}')
        a(f' s_add_u32 s24, s24, {step}')
        a(' s_sub_u32 s25, s25, 1')
        a(' s_cmp_lg_u32 s25, 0')
        a(f' s_cbranch_scc1 L{name}_0')
        a(' s_memrealtime s[28:29]')
    a(' s_waitcnt vmcnt(0)')
    a(' s_memrealtime s[22:23]')
    a(' s_waitcnt lgkmcnt(0)')
    a(f' s_mul_i32 s3, s2, {nw}')
    a(' s_add_u32 s3, s3, s18')
    a(stamp_store([(20,21),(22,23),(28,29)],16,3,vt=2))
    vg = (8+4*U+7)//8*8
    return (name, '\n'.join(o), vg, 40, vg, nw*64)
ks=[]; names=[]
def add(nw,W,pat,flag,mp,kv='seq',U=None):
    n=f's_{nw}_{W}_{pat}_{flag.replace(" ","") or "d"}_{mp}_{kv}_kernel'
    ks.append(kern(n,nw,W,pat,flag,mp,kv,U)); names.append((n,nw))
for W in (8,12,16,24):
    for mp in ('w','wx','g','gx','w4'):
        add(4,W,'c','nt',mp, U=(16 if W in (12,) else (32 if W==24 else None)))
for flag in ('nt sc1','nt sc0','nt sc0 sc1','sc1','sc0 sc1',''):
    add(4,16,'c',flag,'w')
for mp in ('w','wx','g','gx'):
    add(4,16,'t','nt',mp)
    add(4,16,'c','nt',mp,'alt4')
    add(4,16,'c','nt',mp,'alt1')
    add(2,32,'c','nt',mp)
    add(1,32,'c','nt',mp)
    add(8,4,'c','nt',mp)
    add(8,6,'c','nt',mp,U=8)
build(wrap(ks),'stream2')
open('stream2_run.sh','w').write('\n'.join(f'echo == {n}; timeout 60 ./host stream2.co 10 $1 {256*nw} {n}:256:{nw*64}:0 | grep -E "stamp span|^it"' for n,nw in names)+'\n')
print(len(ks))
```

```python
from gcm import *
def kern(name, W, pat, flag, stream, delay=0):
    o=[]; a=o.append
    a(' s_memrealtime s[20:21]')
    a(' s_load_dwordx4 s[4:7], s[0:1], 8')
    a(' s_load_dwordx2 s[34:35], s[0:1], 24')
    a(' s_load_dwordx2 s[16:17], s[0:1], 96')
    a(' v_lshrrev_b32 v2, 6, v0')
    a(' v_and_b32 v1, 63, v0')
    a(' s_nop 0')
    a(' v_readfirstlane_b32 s18, v2')
    a(' s_and_b32 s30, s2, 7')
    a(' s_lshr_b32 s31, s2, 3')
    a(' s_lshl_b32 s30, s30, 1')
    a(' s_lshr_b32 s33, s31, 4')
    a(' s_add_u32 s30, s30, s33')
    a(' s_bfe_u32 s33, s31, 0x10003')
    a(' s_and_b32 s36, s31, 15')
    a(' s_and_b32 s31, s31, 7')
    a(' s_cmp_ge_u32 s18, 4')
    a(f' s_cbranch_scc1 S{name}')
    a(' v_lshlrev_b32 v1, 4, v1')
    a(' s_lshl_b32 s33, s33, 4')
    a(' s_add_u32 s33, s33, s30')
    a(' s_lshl_b32 s19, s33, 21')
    a(' s_lshl_b32 s3, s31, 18')
    a(' s_add_u32 s19, s19, s3')
    a(' s_lshl_b32 s3, s18, 12')
    a(' s_add_u32 s19, s19, s3')
    a(' s_waitcnt lgkmcnt(0)')
    a(' s_mov_b32 s8, s4\n s_mov_b32 s9, s5\n s_mov_b32 s10, 0x4000000\n s_mov_b32 s11, 0x20000')
    a(' s_mov_b32 s12, s6\n s_mov_b32 s13, s7\n s_mov_b32 s14, 0x4000000\n s_mov_b32 s15, 0x20000')
    if delay: a(f' s_sleep {delay}')
    U=16
    if stream:
      for r,srd in ((0,8),(1,12)):
        a(f' s_mov_b32 s24, s19')
        a(f' s_mov_b32 s25, {64//U}')
        a(f'L{name}_{r}:')
        for i in range(U):
            reg=8+4*i
            a(f' s_waitcnt vmcnt({W-1})')
            a(f' buffer_load_dwordx4 v[{reg}:{reg+3}], v1, s[{srd}:{srd+3}], s24 offen offset:{(i%4)*1024} nt')
            if i%4==3: a(' s_add_u32 s24, s24, 0x4000')
        a(' s_sub_u32 s25, s25, 1')
        a(' s_cmp_lg_u32 s25, 0')
        a(f' s_cbranch_scc1 L{name}_{r}')
        if r==0: a(' s_memrealtime s[28:29]')
    a(f' s_branch E{name}')
    a(f'S{name}:')
    a(f' s_setprio 3')
    if pat==1024:
        a(' v_lshlrev_b32 v1, 4, v1'); a(' s_mul_i32 s24, s2, 18432'); step=1024
    else:
        lpr=pat//16; sh={2:1,4:2,8:3,16:4,32:5}[lpr]
        a(f' v_and_b32 v3, {lpr-1}, v1')
        a(f' v_lshrrev_b32 v4, {sh}, v1')
        a(' v_lshlrev_b32 v4, 13, v4')
        a(' v_lshl_add_u32 v1, v3, 4, v4')
        ncg=512//pat
        nk=16//ncg
        rows=576//nk
        a(f' s_and_b32 s3, s36, {ncg-1}')
        a(f' s_mul_i32 s24, s3, {pat}')
        a(f' s_lshr_b32 s3, s36, {ncg.bit_length()-1}')
        a(f' s_mul_i32 s3, s3, {rows*8192}')
        a(' s_add_u32 s24, s24, s3')
        a(' s_lshl_b32 s3, s30, 9')
        a(' s_add_u32 s24, s24, s3')
        step=(1024//pat)*8192
    a(' s_waitcnt lgkmcnt(0)')
    a(' s_mov_b32 s8, s34\n s_mov_b32 s9, s35\n s_mov_b32 s10, 4718592\n s_mov_b32 s11, 0x20000')
    if flag!='none':
      for i in range(18):
        a(f' buffer_load_dwordx4 v[{8+4*i}:{11+4*i}], v1, s[8:11], s24 offen {flag}')
        a(f' s_add_u32 s24, s24, {step}')
    a(' s_memrealtime s[28:29]')
    a(f'E{name}:')
    a(' s_waitcnt vmcnt(0)')
    a(' s_memrealtime s[22:23]')
    a(' s_waitcnt lgkmcnt(0)')
    a(f' s_lshl_b32 s3, s2, 3')
    a(' s_add_u32 s3, s3, s18')
    a(stamp_store([(20,21),(22,23),(28,29)],16,3,vt=2))
    return (name, '\n'.join(o), 256, 48, 256, 320)
ks=[]; names=[]
def add(W,pat,flag,stream,delay=0):
    n=f'w_{W}_{pat}_{flag or "d"}_{stream}_{delay}_kernel'
    ks.append(kern(n,W,pat,flag,stream,delay)); names.append(n)
add(10,32,'none',1)
add(10,32,'none',1,6)
for pat in (32,64,128,256):
    for d in (3,6,12,20):
        add(10,pat,'nt',1,d)
build(wrap(ks),'wqb')
open('wqb_run.sh','w').write('\n'.join(f'echo == {n}; timeout 60 ./host wqb.co 20 $1 2048 {n}:256:320:0 | grep -E "stamp span|wave0|wave4"' for n in names)+'\n')
```

```python
from gcm import *
def kern(name, W, rot, vrev=0, nw=4, U=16):
    o=[]; a=o.append
    a(' s_memrealtime s[20:21]')
    a(' s_load_dwordx4 s[4:7], s[0:1], 8')
    a(' s_load_dwordx2 s[16:17], s[0:1], 96')
    a(' v_lshrrev_b32 v2, 6, v0')
    a(' v_and_b32 v1, 63, v0')
    a(' s_nop 0')
    a(' v_readfirstlane_b32 s18, v2')
    a(' v_lshlrev_b32 v1, 4, v1')
    a(' s_and_b32 s30, s2, 7')
    a(' s_lshr_b32 s31, s2, 3')
    a(' s_lshl_b32 s30, s30, 1')
    a(' s_lshr_b32 s33, s31, 4')
    a(' s_add_u32 s30, s30, s33')
    a(' s_bfe_u32 s33, s31, 0x10003')
    a(' s_and_b32 s36, s31, 7')
    a(' s_lshl_b32 s33, s33, 4')
    a(' s_add_u32 s33, s33, s30')
    a(' s_lshl_b32 s19, s33, 21')
    a(' s_lshl_b32 s3, s36, 18')
    a(' s_add_u32 s19, s19, s3')
    a(' s_lshl_b32 s3, s18, 12')
    a(' s_add_u32 s19, s19, s3')
    if rot=='s': a(' s_lshl_b32 s27, s36, 15')
    elif rot=='j': a(' s_and_b32 s27, s31, 15\n s_lshl_b32 s27, s27, 14')
    elif rot=='x': a(' s_and_b32 s27, s2, 7\n s_lshl_b32 s27, s27, 15')
    elif rot=='h': a(' s_mul_i32 s27, s2, 0x9e37\n s_lshr_b32 s27, s27, 4\n s_and_b32 s27, s27, 15\n s_lshl_b32 s27, s27, 14')
    elif rot=='j5': a(' s_mul_i32 s27, s31, 5\n s_and_b32 s27, s27, 15\n s_lshl_b32 s27, s27, 14')
    elif rot=='j2': a(' s_lshr_b32 s27, s31, 1\n s_lshl_b32 s27, s27, 14')
    elif rot=='s1': a(' s_lshl_b32 s27, s36, 14')
    elif rot=='b8': a(' s_and_b32 s27, s31, 8\n s_lshl_b32 s27, s27, 14')
    elif rot=='g4': a(' s_lshr_b32 s27, s31, 3\n s_lshl_b32 s27, s27, 16')
    elif rot=='x1': a(' s_and_b32 s27, s2, 1\n s_lshl_b32 s27, s27, 14')
    elif rot=='x1h': a(' s_and_b32 s27, s2, 1\n s_lshl_b32 s27, s27, 17')
    elif rot=='x14': a(' s_and_b32 s27, s2, 7\n s_lshl_b32 s27, s27, 14')
    elif rot=='jn': a(' s_sub_u32 s27, 16, s31\n s_and_b32 s27, s27, 15\n s_lshl_b32 s27, s27, 14')
    else: a(' s_mov_b32 s27, 0')
    a(' s_waitcnt lgkmcnt(0)')
    a(' s_mov_b32 s8, s4\n s_mov_b32 s9, s5\n s_mov_b32 s10, 0x4000000\n s_mov_b32 s11, 0x20000')
    a(' s_mov_b32 s12, s6\n s_mov_b32 s13, s7\n s_mov_b32 s14, 0x4000000\n s_mov_b32 s15, 0x20000')
    for r,srd in ((0,8),(1,12)):
        a(f' s_mov_b32 s25, {64//U}')
        a(f'L{name}_{r}:')
        for i in range(U):
            reg=8+4*i
            if i%4==0: a(' s_add_u32 s24, s19, s27')
            a(f' s_waitcnt vmcnt({W-1})')
            a(f' buffer_load_dwordx4 v[{reg}:{reg+3}], v1, s[{srd}:{srd+3}], s24 offen offset:{(i%4)*1024} nt')
            if i%4==3: a(' s_add_u32 s27, s27, 0x4000\n s_and_b32 s27, s27, 0x3ffff')
        a(' s_sub_u32 s25, s25, 1')
        a(' s_cmp_lg_u32 s25, 0')
        a(f' s_cbranch_scc1 L{name}_{r}')
        if r==0: a(' s_memrealtime s[28:29]')
    a(' s_waitcnt vmcnt(0)')
    a(' s_memrealtime s[22:23]')
    a(' s_waitcnt lgkmcnt(0)')
    a(f' s_lshl_b32 s3, s2, 2')
    a(' s_add_u32 s3, s3, s18')
    a(stamp_store([(20,21),(22,23),(28,29)],16,3,vt=2))
    return (name, '\n'.join(o), 80, 48, 80, 256)
ks=[]; names=[]
for W in (8,12):
    for rot in ('n','j','j5','j2','s1','b8','g4','x1','x1h','x14','jn'):
        n=f'r_{W}_{rot}_kernel'; ks.append(kern(n,W,rot)); names.append(n)
build(wrap(ks),'stream3')
open('s3.sh','w').write('for r in 1 2 3 4 5; do for k in '+' '.join(names)+'; do echo -n "$k "; timeout 60 ./host stream3.co 16 23 1024 $k:256:256:0 | grep "span us" | sed -E "s/.*med ([0-9.]+) max.*/\\1/"; done; done | awk \'{n[$1]++; s[$1]+=$2} END{for(k in n) printf "%s %.2f\\n",k,s[k]/n[k]}\' | sort\n')
```
